```python
import torch

def _softmax(x, axis=-1):
    return torch.softmax(x, dim=axis)
def _gelu(x):
    return torch.nn.functional.gelu(x, approximate="tanh")
def _silu(x):
    return torch.nn.functional.silu(x)
def _sigmoid(x):
    return torch.sigmoid(x)
def _layernorm(x, axis=-1, eps=1e-5):
    m = x.mean(dim=axis, keepdim=True)
    v = x.var(dim=axis, keepdim=True, unbiased=False)
    return (x - m) / torch.sqrt(v + eps)
def _scatter_add(tgt, idx, src, axis=0):
    return tgt.clone().index_add_(axis, idx, src)
def _segment_sum(src, seg, n):
    out = torch.zeros((n,) + src.shape[1:], dtype=src.dtype)
    return out.index_add_(0, seg, src)
def _pad(x, pw):
    flat = tuple(v for pair in reversed(pw) for v in pair)
    return torch.nn.functional.pad(x, flat)

kernel_name = 'recurrent_scan__gqa_block_cached__mixer_token_mlp__prompt'

def setup_inputs():

    _w = (lambda a: (lambda t: t.to(torch.bfloat16) if t.is_floating_point() else t)(torch.as_tensor(a)))
    def _A_setup():
        B, Sq, D = 1, 2048, 640
        Hq, Hkv, Sk, Dh = 32, 32, 2048, 128
        assert Hq % Hkv == 0, (Hq, Hkv)
        return {
            "x": _w((lambda *s: torch.randn(*s, dtype=torch.bfloat16) * 0.1)(B, Sq, D)),
            "k_cache": _w((lambda *s: torch.randn(*s, dtype=torch.bfloat16) * 0.8)(B, Hkv, Sk, Dh)),
            "v_cache": _w((lambda *s: torch.randn(*s, dtype=torch.bfloat16) * 3.2)(B, Hkv, Sk, Dh)),
            "wq": _w((lambda *s: torch.randn(*s, dtype=torch.bfloat16) * 0.8)(D, Hq * Dh) * (D ** -0.5)),
            "wo": _w((lambda *s: torch.randn(*s, dtype=torch.bfloat16) * 3.2)(Hq * Dh, D) * ((Hq * Dh) ** -0.5)),
        }
    _A_in = _A_setup()

    def _B_setup():
        B, S, D, F = 1, 2048, 640, 1728
        return {
            "x": _w((lambda *s: torch.randn(*s, dtype=torch.bfloat16) * 0.1)(B, S, D)),
            "w1": _w((lambda *s: torch.randn(*s, dtype=torch.bfloat16) * 3.2)(S, F) * (S ** -0.5)),
            "b1": _w((lambda *s: torch.randn(*s, dtype=torch.bfloat16) * 3.2)(F) * 0.02),
            "w2": _w((lambda *s: torch.randn(*s, dtype=torch.bfloat16) * 3.2)(F, S) * (F ** -0.5)),
            "b2": _w((lambda *s: torch.randn(*s, dtype=torch.bfloat16) * 3.2)(S) * 0.02),
        }
    _B_in = _B_setup()

    return {
        "A_x": _A_in["x"],
        "A_k_cache": _A_in["k_cache"],
        "A_v_cache": _A_in["v_cache"],
        "A_wq": _A_in["wq"],
        "A_wo": _A_in["wo"],
        "B_x": _B_in["x"],
        "B_w1": _B_in["w1"],
        "B_b1": _B_in["b1"],
        "B_w2": _B_in["w2"],
        "B_b2": _B_in["b2"],
    }

def reference(A_x, A_k_cache, A_v_cache, A_wq, A_wo, B_x, B_w1, B_b1, B_w2, B_b2):
    def _A_ref(x, k_cache, v_cache, wq, wo):
        B, Sq, D = x.shape
        Hq, Dh = 32, 128
        Hkv = k_cache.shape[1]
        rep = Hq // Hkv
        q = (lambda x, *d: x.permute(*d))((x @ wq).reshape(B, Sq, Hq, Dh), 0, 2, 1, 3)
        k = (lambda x, n, axis: torch.repeat_interleave(x, n, dim=axis))(k_cache, rep, axis=1)
        v = (lambda x, n, axis: torch.repeat_interleave(x, n, dim=axis))(v_cache, rep, axis=1)
        scores = torch.einsum("bhqd,bhkd->bhqk", q, k) * (Dh ** -0.5)
        p = _softmax(scores, axis=-1)
        o = torch.einsum("bhqk,bhkd->bhqd", p, v)
        return (lambda x, *d: x.permute(*d))(o, 0, 2, 1, 3).reshape(B, Sq, Hq * Dh) @ wo

    def _B_ref(x, w1, b1, w2, b2):
        B, S, D = x.shape
        h = _layernorm(x, axis=-1)
        u = torch.einsum("bsd,sf->bdf", h, w1) + b1
        u = _gelu(u)
        y = torch.einsum("bdf,fs->bds", u, w2) + b2
        return (lambda x, *d: x.permute(*d))(y, 0, 2, 1)

    x = A_x
    xn = _layernorm(x, axis=-1)
    s = _A_ref(xn, A_k_cache, A_v_cache, A_wq, A_wo)
    g = _silu(_B_ref(xn, B_w1, B_b1, B_w2, B_b2))
    return x + s * g
```

```python
import re

REG_RE = re.compile(r"^(-?)(abs\()?([vas])(?:(\d+)|\[(\d+):(\d+)\])\)?$")


def regs_of(tok):
    tok = tok.strip()
    if tok in ("vcc", "exec"):
        return [tok]
    if tok in ("vcc_lo", "vcc_hi"):
        return ["vcc"]
    if tok in ("exec_lo", "exec_hi"):
        return ["exec"]
    if tok == "m0":
        return ["m0"]
    m = REG_RE.match(tok)
    if not m:
        return []
    f = m.group(3)
    if m.group(4) is not None:
        return [f + m.group(4)]
    return [f + str(i) for i in range(int(m.group(5)), int(m.group(6)) + 1)]


TRANS = ("v_exp_f32", "v_log_f32", "v_rcp_f32", "v_rsq_f32", "v_sqrt_f32", "v_sin_f32", "v_cos_f32")


class I:
    __slots__ = ("txt", "kind", "rd", "wr", "tag", "op", "passes", "mc", "mab", "states", "note")

    def __init__(self, txt, tag=None):
        self.txt = txt
        self.tag = tag
        self.note = None
        self.passes = 0
        self.mc = self.mab = ()
        self.states = 1
        t = txt.split(";")[0].strip()
        if t.endswith(":"):
            self.kind, self.op, self.rd, self.wr, self.states = "label", "", set(), set(), 0
            return
        if t.startswith("."):
            self.kind, self.op, self.rd, self.wr, self.states = "dir", "", set(), set(), 0
            return
        parts = t.split(None, 1)
        op = parts[0]
        self.op = op
        ops = []
        if len(parts) > 1:
            ops = [x.strip() for x in parts[1].split(",")]
            last = ops[-1].split()
            mods = last[1:]
            ops[-1] = last[0]
        else:
            mods = []
        R = [regs_of(o) for o in ops]
        rd, wr = set(), set()
        if op.startswith("v_mfma"):
            self.kind = "mfma"
            self.passes = 4 if "16x16x32" in op else 8 if "32x32x16" in op else None
            assert self.passes
            wr |= set(R[0])
            self.mab = tuple(R[1] + R[2])
            self.mc = tuple(R[3])
            rd |= set(self.mab) | set(self.mc)
        elif op.startswith("ds_read") or op.startswith("ds_bpermute") or op.startswith("ds_swizzle"):
            self.kind = "ds"
            wr |= set(R[0])
            for r in R[1:]:
                rd |= set(r)
        elif op.startswith("ds_"):
            self.kind = "ds"
            for r in R:
                rd |= set(r)
        elif op.startswith("buffer_load") or op.startswith("global_load"):
            if "lds" in mods or "_lds_" in op:
                self.kind = "dma"
                for r in R:
                    rd |= set(r)
                rd.add("m0")
            else:
                self.kind = "vload"
                wr |= set(R[0])
                for r in R[1:]:
                    rd |= set(r)
        elif op.startswith("buffer_store") or op.startswith("global_store"):
            self.kind = "vstore"
            for r in R:
                rd |= set(r)
        elif op.startswith("buffer_atomic") or op.startswith("global_atomic"):
            self.kind = "vatomic"
            for r in R:
                rd |= set(r)
            if "sc0" in mods:
                wr |= set(R[0])
        elif op in ("buffer_wbl2", "buffer_inv"):
            self.kind = "vstore"
        elif op.startswith("s_load") or op.startswith("s_memtime") or op.startswith("s_memrealtime"):
            self.kind = "smem"
            wr |= set(R[0])
            for r in R[1:]:
                rd |= set(r)
        elif op == "s_waitcnt":
            self.kind = "wait"
        elif op == "s_nop":
            self.kind = "nop"
            self.states = int(ops[0], 0) + 1
        elif op == "s_barrier":
            self.kind = "barrier"
        elif op.startswith("s_cbranch") or op == "s_branch" or op == "s_endpgm":
            self.kind = "branch"
            if "vcc" in op:
                rd.add("vcc")
            if "exec" in op:
                rd.add("exec")
            if "scc" in op:
                rd.add("scc")
        elif op in ("s_setprio", "s_sleep"):
            self.kind = "salu"
        elif op.startswith("s_cmp"):
            self.kind = "salu"
            for r in R:
                rd |= set(r)
            wr.add("scc")
        elif op.startswith("s_"):
            self.kind = "salu"
            wr |= set(R[0])
            for r in R[1:]:
                rd |= set(r)
            if "saveexec" in op:
                wr.add("exec")
                rd.add("exec")
            if op.startswith("s_cselect") or op.startswith("s_addc") or op.startswith("s_subb"):
                rd.add("scc")
            if not (op.startswith("s_mov") or op.startswith("s_cselect") or op.startswith("s_mul") or op.startswith("s_getreg")):
                wr.add("scc")
        elif op.startswith("v_"):
            self.kind = "trans" if any(op.startswith(x) for x in TRANS) else "valu"
            if op.startswith("v_permlane") and "swap" in op:
                rd |= set(R[0]) | set(R[1])
                wr |= set(R[0]) | set(R[1])
            else:
                wr |= set(R[0])
                k = 1
                if "_co_" in op:
                    wr |= set(R[1])
                    k = 2
                for r in R[k:]:
                    rd |= set(r)
                if op.startswith("v_fmac") or op.startswith("v_dot2c") or op.startswith("v_writelane") or "_dpp" in op:
                    rd |= set(R[0])
        else:
            raise ValueError("unknown instruction: " + txt)
        self.rd, self.wr = rd, wr

    def __repr__(self):
        return self.txt


class WaitTag:
    kind = "waittag"

    def __init__(self, *tags):
        self.tags = set(tags)


class Need:
    kind = "need"

    def __init__(self, *ranges):
        self.rd = set()
        for r in ranges:
            self.rd |= set(regs_of(r))
        self.wr = set()


class WaitLds:
    kind = "waitlds"


class Loop:
    kind = "loop"

    def __init__(self, label, body, tail):
        self.label, self.body, self.tail = label, body, tail


def as_items(lst):
    out = []
    for x in lst:
        if isinstance(x, str):
            for l in x.split("\n"):
                if l.strip():
                    out.append(I(l.strip()))
        elif isinstance(x, list):
            out += as_items(x)
        else:
            out.append(x)
    return out


class State:
    def __init__(self):
        self.lg = []
        self.vm = []

    def copy(self):
        s = State()
        s.lg = list(self.lg)
        s.vm = list(self.vm)
        return s


def _need(x, st):
    nl = nv = None
    if x.kind == "waittag":
        for idx, (d, tag) in enumerate(st.vm):
            if tag in x.tags:
                nv = len(st.vm) - idx - 1
        return nl, nv
    if x.kind == "waitlds":
        if st.lg:
            nl = 0
        return nl, nv
    if x.kind in ("label", "dir"):
        return None, None
    touched = x.rd | x.wr
    for idx, (d, smem) in enumerate(st.lg):
        if d & touched:
            n = len(st.lg) - idx - 1
            if smem or any(s for _, s in st.lg):
                n = 0
            nl = n if nl is None else min(nl, n)
    for idx, (d, tag) in enumerate(st.vm):
        if d & touched:
            n = len(st.vm) - idx - 1
            nv = n if nv is None else min(nv, n)
    return nl, nv


def _apply_wait(st, nl, nv):
    if nl is not None:
        nl = min(nl, 15)
        if len(st.lg) > nl:
            st.lg = st.lg[len(st.lg) - nl:] if nl else []
    if nv is not None:
        nv = min(nv, 63)
        if len(st.vm) > nv:
            st.vm = st.vm[len(st.vm) - nv:] if nv else []


def _issue(x, st):
    if x.kind == "ds":
        st.lg.append((set(x.wr), False))
    elif x.kind == "smem":
        st.lg.append((set(x.wr), True))
    elif x.kind in ("vload", "dma", "vstore", "vatomic"):
        st.vm.append((set(x.wr), x.tag))
    elif x.kind == "wait":
        m = re.search(r"lgkmcnt\((\d+)\)", x.txt)
        nl = int(m.group(1)) if m else None
        m = re.search(r"vmcnt\((\d+)\)", x.txt)
        nv = int(m.group(1)) if m else None
        _apply_wait(st, nl, nv)


def _mn(a, b):
    if a is None:
        return b
    if b is None:
        return a
    return min(a, b)


def _sim(items, st, forced):
    for idx, x in enumerate(items):
        assert x.kind != "loop"
        nl, nv = _need(x, st)
        fl, fv = forced.get(idx, (None, None))
        nl, nv = _mn(nl, fl), _mn(nv, fv)
        if nl is not None or nv is not None:
            forced[idx] = (nl, nv)
            _apply_wait(st, nl, nv)
        if x.kind not in ("waittag", "waitlds", "need"):
            _issue(x, st)
    return st


def _emit(items, forced):
    out = []
    for idx, x in enumerate(items):
        if idx in forced:
            nl, nv = forced[idx]
            s = "s_waitcnt"
            if nv is not None:
                s += " vmcnt(%d)" % min(nv, 63)
            if nl is not None:
                s += " lgkmcnt(%d)" % min(nl, 15)
            out.append(I(s))
        if x.kind not in ("waittag", "waitlds", "need"):
            out.append(x)
    return out


def insert_waits(items, st=None):
    st = st or State()
    out = []
    run = []

    def flush():
        nonlocal st, run
        if run:
            forced = {}
            st = _sim(run, st, forced)
            out.extend(_emit(run, forced))
            run = []

    for x in items:
        if x.kind == "loop":
            flush()
            body = x.body + x.tail
            forced = {}
            entry = st
            for _ in range(6):
                before = dict(forced)
                s = entry.copy()
                s = _sim(body, s, forced)
                s = _sim(body, s, forced)
                s = _sim(body, s, forced)
                if forced == before:
                    break
            else:
                raise RuntimeError("loop waits did not converge")
            st = s
            out.append(Loop(x.label, _emit(body, forced), []))
        else:
            run.append(x)
    flush()
    return out


def _required(p, c):
    need = 0
    isvalu = lambda x: x.kind in ("valu", "trans")
    if p.kind == "mfma":
        d = p.wr
        raw = {4: 8, 8: 12}[p.passes]
        if c.kind == "mfma":
            if d & set(c.mab):
                need = max(need, raw)
            if d & set(c.mc):
                if not (set(c.mc) == d and c.passes == p.passes):
                    need = max(need, {4: 6, 8: 10}[p.passes])
        elif isvalu(c) or c.kind in ("ds", "vload", "dma", "vstore", "vatomic"):
            if d & (c.rd | c.wr):
                need = max(need, raw)
        if isvalu(c) and set(p.mc) & c.wr:
            need = max(need, {4: 3, 8: 7}[p.passes])
    if isvalu(p):
        vw = {r for r in p.wr if r[0] in "va" and r != "vcc"}
        sw = {r for r in p.wr if r[0] == "s" or r == "vcc"}
        if c.kind == "mfma" and vw & c.rd:
            need = max(need, 2)
        if isvalu(c):
            if p.kind == "trans" and c.kind != "trans" and vw & c.rd:
                need = max(need, 1)
            if (c.op.startswith("v_permlane") or "_dpp" in c.op) and vw & c.rd:
                need = max(need, 2)
            if (c.op.startswith("v_readlane") or c.op.startswith("v_readfirstlane")) and vw & c.rd:
                need = max(need, 1)
            if sw & c.rd or ("vcc" in sw and c.op.startswith("v_cndmask")):
                need = max(need, 2)
            if (c.op.startswith("v_readlane") or c.op.startswith("v_writelane")) and sw & c.rd:
                need = max(need, 4)
        if c.kind in ("vload", "dma", "vstore", "vatomic") and sw & c.rd:
            need = max(need, 5)
        if c.kind in ("salu", "branch") and sw & c.rd:
            need = max(need, 4)
    if p.kind == "salu" and "m0" in p.wr and c.kind == "dma":
        need = max(need, 1)
    if p.kind in ("vstore", "vatomic") and ("x4" in p.op or "x3" in p.op):
        data = {r for r in p.rd if r[0] in "va"}
        if c.kind not in ("label", "dir") and data & c.wr:
            need = max(need, 2)
    return need


def pad_hazards(items, report=None):
    LOOK = 24

    def pad(seq, hist):
        out = []
        added = 0
        for x in seq:
            if x.kind in ("label", "dir"):
                out.append(x)
                continue
            dist = 0
            lack = 0
            for p in reversed(hist[-LOOK:]):
                n = _required(p, x)
                if n > dist:
                    lack = max(lack, n - dist)
                dist += p.states
                if dist >= 20:
                    break
            if lack:
                nop = I("s_nop %d" % (lack - 1))
                out.append(nop)
                hist.append(nop)
                added += 1
            out.append(x)
            hist.append(x)
        return out, added

    out = []
    hist = []
    for x in items:
        if x.kind == "loop":
            body = x.body
            tot = 0
            for _ in range(4):
                body, a = pad(body, hist)
                tot += a
                if a == 0 and _ > 0:
                    break
            if report is not None:
                report.append((x.label, tot))
            out.append(Loop(x.label, body, []))
        else:
            o, a = pad([x], hist)
            out += o
    return out


def render(items):
    lines = []
    for x in items:
        if x.kind == "loop":
            lines.append(".p2align 6")
            lines.append(x.label + ":")
            lines += render(x.body)
        elif x.kind in ("label",):
            lines.append(x.txt)
        else:
            lines.append("    " + x.txt)
    return lines


def finalize(items, report=None):
    items = as_items(items)
    for x in items:
        if x.kind == "loop":
            x.body = as_items(x.body)
            x.tail = as_items(x.tail)
    items = insert_waits(items)
    items = pad_hazards(items, report)
    return render(items)


class Item:
    def __init__(self, key, release, deadline, slots=1, after=None, lag=0, prio=0):
        self.key, self.release, self.deadline, self.slots = key, release, deadline, slots
        self.after = after or []
        self.lag = lag
        self.prio = prio
        self.pos = None


def modulo_schedule(items, nm, cap=2, capfn=None):
    used = [0] * nm
    by = {it.key: it for it in items}
    order = 0
    res = {}
    pending = list(items)
    lo = min(it.release for it in items)
    hi = max(it.deadline for it in items)
    for g in range(lo, hi + 1):
        c = capfn(g % nm) if capfn else cap
        while True:
            ready = []
            for it in pending:
                if it.release > g:
                    continue
                ok = True
                for k in it.after:
                    p = by[k].pos
                    if p is None or p + it.lag > g:
                        ok = False
                        break
                if ok:
                    ready.append(it)
            if not ready:
                break
            ready.sort(key=lambda it: (it.deadline, it.prio))
            pick = None
            for it in ready:
                if used[g % nm] + it.slots <= c or it.deadline <= g:
                    pick = it
                    break
            if pick is None:
                break
            pick.pos = g
            used[g % nm] += pick.slots
            res[pick.key] = (g, order)
            order += 1
            pending.remove(pick)
    assert not pending, [it.key for it in pending][:8]
    return res, used
```

```python
import sys, math, struct
from asmgen import *

XN_OFF, HF_OFF, OF_OFF, UF_OFF = 0, 0x400000, 0x800000, 0x2000000
A_X, A_K, A_V, A_WQ, A_WO, A_W1, A_B1, A_W2, A_B2, A_OUT, A_DBG, A_WS = 0, 8, 16, 24, 32, 48, 56, 64, 72, 80, 88, 96
LOG2E = 1.4426950408889634


def fbits(x):
    return "0x%08x" % struct.unpack("<I", struct.pack("<f", x))[0]


def vr(a, n=1, f="v"):
    return "%s%d" % (f, a) if n == 1 else "%s[%d:%d]" % (f, a, a + n - 1)


def ar(a, n=1):
    return vr(a, n, "a")


def srd(s, ptr, off, size):
    o = []
    if off is None or off == 0:
        o += ["s_mov_b32 s%d, s%d" % (s, ptr), "s_mov_b32 s%d, s%d" % (s + 1, ptr + 1)]
    else:
        o += ["s_add_u32 s%d, s%d, %s" % (s, ptr, off), "s_addc_u32 s%d, s%d, 0" % (s + 1, ptr + 1)]
    o += ["s_mov_b32 s%d, %s" % (s + 2, size), "s_mov_b32 s%d, 0x20000" % (s + 3)]
    return o


def mfma(d, a, b, c):
    return "v_mfma_f32_16x16x32_bf16 %s, %s, %s, %s" % (d, a, b, c)


def T(txt, tag):
    return I(txt, tag)


def kernel_text(name, lines, vgpr, accum, sgpr=102):
    return "\n".join([".text", ".globl %s" % name, ".p2align 8", ".type %s,@function" % name, name + ":"] + lines + [
        '.section .rodata,"a"', ".p2align 6", ".amdhsa_kernel %s" % name,
        "  .amdhsa_next_free_vgpr %d" % vgpr, "  .amdhsa_next_free_sgpr %d" % sgpr,
        "  .amdhsa_accum_offset %d" % accum, "  .amdhsa_group_segment_fixed_size 0",
        "  .amdhsa_kernarg_size 104", "  .amdhsa_user_sgpr_count 2",
        "  .amdhsa_user_sgpr_kernarg_segment_ptr 1", "  .amdhsa_system_sgpr_workgroup_id_x 1",
        ".end_amdhsa_kernel", ""])


def interleave(mfmas, fillers):
    out = list(fillers.get(-1, []))
    for g, m in enumerate(mfmas):
        out += m if isinstance(m, list) else [m]
        out += fillers.get(g, [])
    for g in sorted(k for k in fillers if k >= len(mfmas)):
        out += fillers[g]
    return out


def spread(fillers, items, g0, g1):
    n = len(items)
    for k, it in enumerate(items):
        g = g0 + (k * (g1 - g0 + 1)) // n
        fillers.setdefault(g, []).extend(it if isinstance(it, list) else [it])


def reduce32(v, t):
    o = []
    for ctl in ("quad_perm:[1,0,3,2]", "quad_perm:[2,3,0,1]", "row_half_mirror", "row_mirror"):
        o.append("v_add_f32_dpp v%d, v%d, v%d %s row_mask:0xf bank_mask:0xf" % (v, v, v, ctl))
    o += ["v_mov_b32 v%d, v%d" % (t, v), "v_permlane16_swap_b32 v%d, v%d" % (v, t), "v_add_f32 v%d, v%d, v%d" % (v, v, t)]
    return o


def ln_stats(x0, acc, tmp):
    o = ["v_add_f32 v%d, v%d, v%d" % (acc, x0, x0 + 1), "v_add_f32 v%d, v%d, v%d" % (tmp, x0 + 2, x0 + 3)]
    for k in range(4, 20, 2):
        o += ["v_add_f32 v%d, v%d, v%d" % (acc, acc, x0 + k), "v_add_f32 v%d, v%d, v%d" % (tmp, tmp, x0 + k + 1)]
    o += ["v_add_f32 v%d, v%d, v%d" % (acc, acc, tmp)]
    o += reduce32(acc, tmp)
    o += ["v_mul_f32 v%d, %s, v%d" % (acc, fbits(1.0 / 640), acc)]
    o += ["v_sub_f32 v%d, v%d, v%d" % (x0 + k, x0 + k, acc) for k in range(20)]
    o += ["v_mul_f32 v%d, v%d, v%d" % (acc, x0, x0), "v_mul_f32 v%d, v%d, v%d" % (tmp, x0 + 1, x0 + 1)]
    for k in range(2, 20, 2):
        o += ["v_fmac_f32 v%d, v%d, v%d" % (acc, x0 + k, x0 + k), "v_fmac_f32 v%d, v%d, v%d" % (tmp, x0 + k + 1, x0 + k + 1)]
    o += ["v_add_f32 v%d, v%d, v%d" % (acc, acc, tmp)]
    o += reduce32(acc, tmp)
    o += ["v_mul_f32 v%d, %s, v%d" % (acc, fbits(1.0 / 640), acc), "v_add_f32 v%d, %s, v%d" % (acc, fbits(1e-5), acc),
          "v_rsq_f32 v%d, v%d" % (acc, acc)]
    return o


def unpack(dst, src, n):
    o = []
    for k in range(n):
        o += ["v_lshlrev_b32 v%d, 16, v%d" % (dst + 2 * k, src + k), "v_and_b32 v%d, 0xffff0000, v%d" % (dst + 2 * k + 1, src + k)]
    return o


def gen_ln():
    RS = 1296
    HB = 8 * RS
    o = ["s_cmp_ge_u32 s2, 256", "s_cbranch_scc1 L_ln_done",
         "s_load_dwordx2 s[4:5], s[0:1], %d" % A_X, "s_load_dwordx2 s[6:7], s[0:1], %d" % A_WS,
         "v_lshrrev_b32 v1, 5, v0",
         "v_and_b32 v2, 31, v0",
         "v_lshrrev_b32 v9, 6, v0",
         "v_mul_u32_u24 v3, 1280, v1",
         "v_lshl_add_u32 v3, v2, 3, v3",
         "v_readfirstlane_b32 s24, v9",
         "s_mul_i32 s3, s2, 10240"]
    o += srd(8, 4, None, 2048 * 1280)
    for m in range(5):
        o.append("buffer_load_dwordx2 v[%d:%d], v3, s[8:11], s3 offen offset:%d" % (10 + 2 * m, 11 + 2 * m, 256 * m))
    o += srd(12, 6, XN_OFF, 2048 * 1280) + srd(16, 6, HF_OFF, 2048 * 1280)
    o += ["v_mul_u32_u24 v4, %d, v1" % RS, "v_lshl_add_u32 v4, v2, 3, v4"]
    o += ["v_and_b32 v5, 7, v0", "v_lshrrev_b32 v6, 3, v0",
          "v_mul_u32_u24 v7, %d, v5" % RS, "v_lshl_add_u32 v7, v6, 4, v7",
          "v_lshrrev_b32 v8, 2, v6", "v_lshlrev_b32 v8, 12, v8",
          "v_and_b32 v6, 3, v6", "v_lshl_add_u32 v8, v6, 8, v8", "v_lshl_add_u32 v8, v5, 4, v8",
          "s_lshr_b32 s20, s2, 3", "s_mul_i32 s20, s20, 81920",
          "s_lshr_b32 s21, s2, 1", "s_and_b32 s21, s21, 3", "s_lshl_b32 s21, s21, 10", "s_add_u32 s20, s20, s21",
          "s_and_b32 s21, s2, 1", "s_lshl_b32 s21, s21, 7", "s_add_u32 s20, s20, s21",
          "s_add_u32 s21, s20, 32768", "s_add_u32 s22, s20, 65536"]
    o += ["v_and_b32 v5, 15, v0", "v_lshrrev_b32 v6, 2, v5", "v_mul_u32_u24 v72, %d, v6" % RS,
          "v_and_b32 v6, 3, v0", "v_lshl_add_u32 v72, v6, 3, v72",
          "v_lshrrev_b32 v6, 4, v0", "v_lshl_add_u32 v72, v6, 5, v72"]
    for m in range(3):
        o += ["v_add_u32 v9, %d, v6" % (16 * m), "v_mul_u32_u24 v76, 52, v9", "v_lshrrev_b32 v76, 8, v76",
              "v_mul_u32_u24 v77, 5, v76", "v_sub_u32 v77, v9, v77", "v_mul_u32_u24 v76, %d, v76" % (64 * 5120),
              "v_lshl_add_u32 v76, v77, 10, v76", "v_lshl_add_u32 v%d, v5, 4, v76" % (73 + m)]
    o += ["s_lshr_b32 s23, s2, 2", "s_mul_i32 s23, s23, 5120", "s_and_b32 s25, s2, 3", "s_lshl_b32 s25, s25, 8",
          "s_add_u32 s23, s23, s25"]
    o += unpack(20, 10, 10)
    o += ln_stats(20, 40, 41)
    o += ["v_mul_f32 v41, %s, v40" % fbits(LOG2E / math.sqrt(128.0))]
    for k in range(10):
        o += ["v_mul_f32 v10, v%d, v41" % (20 + 2 * k), "v_mul_f32 v11, v%d, v41" % (21 + 2 * k),
              "v_cvt_pk_bf16_f32 v%d, v10, v11" % (52 + k),
              "v_mul_f32 v12, v%d, v40" % (20 + 2 * k), "v_mul_f32 v13, v%d, v40" % (21 + 2 * k),
              "v_cvt_pk_bf16_f32 v%d, v12, v13" % (42 + k)]
    for m in range(5):
        o.append("ds_write_b64 v4, v[%d:%d] offset:%d" % (52 + 2 * m, 53 + 2 * m, 256 * m))
    o += unpack(20, 42, 10)
    o += ln_stats(20, 40, 41)
    for k in range(10):
        o += ["v_mul_f32 v12, v%d, v40" % (20 + 2 * k), "v_mul_f32 v13, v%d, v40" % (21 + 2 * k),
              "v_cvt_pk_bf16_f32 v%d, v12, v13" % (62 + k)]
    for m in range(5):
        o.append("ds_write_b64 v4, v[%d:%d] offset:%d" % (62 + 2 * m, 63 + 2 * m, HB + 256 * m))
    o += [WaitLds(), "s_barrier"]
    for m in range(2):
        o.append("ds_read_b128 v[%d:%d], v7 offset:%d" % (20 + 4 * m, 23 + 4 * m, 512 * m))
    for m in range(2):
        for u in range(2):
            o.append("ds_read_b64_tr_b16 v[%d:%d], v72 offset:%d" % (32 + 4 * m + 2 * u, 33 + 4 * m + 2 * u, HB + 512 * m + 4 * u * RS))
    for m in range(2):
        o.append("buffer_store_dwordx4 v[%d:%d], v8, s[12:15], s%d offen" % (20 + 4 * m, 23 + 4 * m, 20 + m))
    for m in range(2):
        o.append("buffer_store_dwordx4 v[%d:%d], v%d, s[16:19], s23 offen" % (32 + 4 * m, 35 + 4 * m, 73 + m))
    o += ["s_cmp_ge_u32 s24, 2", "s_cbranch_scc1 L_ln_done"]
    o.append("ds_read_b128 v[28:31], v7 offset:1024")
    for u in range(2):
        o.append("ds_read_b64_tr_b16 v[%d:%d], v72 offset:%d" % (40 + 2 * u, 41 + 2 * u, HB + 1024 + 4 * u * RS))
    o.append("buffer_store_dwordx4 v[28:31], v8, s[12:15], s22 offen")
    o.append("buffer_store_dwordx4 v[40:43], v75, s[16:19], s23 offen")
    o += ["L_ln_done:", "s_endpgm"]
    return kernel_text("ln_kernel", finalize(o), 80, 80, 32), 2 * HB


class P2:
    ONES = True
    BAR = 112
    E0 = 8
    RL = 8
    KGRP = 1
    VGRP = 2
    DMA0 = 2
    DMAD = 12


S_XN, S_WQ, S_K, S_V, S_O, S_W1, S_H, S_U, S_B1 = 4, 8, 12, 16, 20, 24, 28, 32, 36
S_W, S_KV, S_T0, S_T1, S_RETRY = 40, 41, 42, 43, 44
S_MK, S_MV = 48, 52
S_PTR = 60
V_KRD, V_VRD, V_KDMA, V_VDMA, V_ONE, V_NEGM, V_L, V_FLOOR, V_T = 2, 6, 14, 18, 20, 24, 40, 56, 60
V_S, V_P, V_Q = 64, 128, 192
V_LANE16 = 1
A_O, A_KS, A_VS = 0, 128, 192
LDS_K, LDS_V, LDS_FLAG = 0, 65536, 131072
NT = 32


def Sreg(kb, qb): return V_S + (kb * 4 + qb) * 4
def Preg(buf, qb, t): return V_P + buf * 32 + (qb * 2 + t) * 4
def Qreg(qb, ks): return V_Q + (qb * 4 + ks) * 4
def Oreg(db, qb): return A_O + (db * 4 + qb) * 4
def kslot(t): return t % 4
def vslot(t): return (t + 2) % 4


def dma_k(tile, i, soff):
    return T("buffer_load_dwordx4 v%d, s[%d:%d], %s offen offset:%d lds" % (V_KDMA + i, S_K, S_K + 3, soff, 1024 * i), "K%d" % (tile % 4))


def dma_v(tile, i, soff):
    return T("buffer_load_dwordx4 v%d, s[%d:%d], %s offen offset:%d lds" % (V_VDMA + (i & 1), S_V, S_V + 3, soff, 1024 * i), "V%d" % (tile % 4))


def dma_group_k(tile):
    return ["s_mov_b32 s%d, %d" % (S_T0, tile * 16384), "s_mov_b32 m0, s%d" % (S_MK + kslot(tile))] + \
        [dma_k(tile, i, "s%d" % S_T0) for i in range(4)]


def dma_group_v(tile):
    return ["s_mov_b32 s%d, %d" % (S_T1, (tile + 2) * 16384), "s_mov_b32 m0, s%d" % (S_MV + vslot(tile))] + \
        [dma_v(tile, i, "s%d" % S_T1) for i in range(4)]


def rd_k(tile, kb, ks):
    r = A_KS + kb * 16 + ks * 4
    return "ds_read_b128 %s, v%d offset:%d" % (ar(r, 4), V_KRD + ks, kslot(tile) * 16384 + kb * 4096)


def rd_v(tile, db, t, u):
    r = A_VS + db * 8 + t * 4 + u * 2
    return "ds_read_b64_tr_b16 %s, v%d offset:%d" % (ar(r, 2), V_VRD + db, vslot(tile) * 16384 + (32 * t + 16 * u) * 256)


def qk_mfmas(p, c_zero=False):
    ms = []
    for kb in range(4):
        for qb in range(4):
            for ks in range(4):
                d = vr(Sreg(kb, qb), 4)
                c = d if ks else ("0" if c_zero else vr(V_NEGM + 4 * qb, 4))
                m = mfma(d, ar(A_KS + kb * 16 + ks * 4, 4), vr(Qreg(qb, ks), 4), c)
                if qb == 0 and ks == 0 and kb % p.KGRP == 0:
                    m = [Need(ar(A_KS + kb * 16, 16 * p.KGRP)), m]
                ms.append(m)
    return ms


def pv_pos(p, db):
    return 64 + 8 * db + (2 * (db >> 1) if p.ONES else 0)


def pv_mfmas(p, buf):
    ms = []
    for db in range(8):
        for qb in range(4):
            for t in range(2):
                d = ar(Oreg(db, qb), 4)
                m = mfma(d, ar(A_VS + db * 8 + t * 4, 4), vr(Preg(buf, qb, t), 4), d)
                if qb == 0 and t == 0 and db % p.VGRP == 0:
                    m = [Need(ar(A_VS + db * 8, 8 * p.VGRP)), m]
                ms.append(m)
        if p.ONES and db & 1:
            qb = db >> 1
            for t in range(2):
                d = vr(V_L + 4 * qb, 4)
                ms.append(mfma(d, vr(V_ONE, 4), vr(Preg(buf, qb, t), 4), d))
    return ms


def attn_schedule(p):
    NM = 136 if p.ONES else 128
    items = []
    for n in range(64):
        rel = max((n | 3) + 5, p.E0 + (n * NM) // 64)
        items.append(Item(("exp", n), rel, rel + 3, slots=2))
    for n in range(0, 64, 2):
        items.append(Item(("cvt", n), 0, NM + (n & ~3) - 1, after=[("exp", n), ("exp", n + 1)], lag=1, prio=1))
        items[-1].deadline = min(items[-1].deadline, p.E0 + ((n + 1) * NM) // 64 + 8)
    if not p.ONES:
        for n in range(64):
            items.append(Item(("add", n), 0, min(NM + (n & ~3) - 1, p.E0 + (n * NM) // 64 + 8), after=[("exp", n)], lag=1, prio=1))
    items.append(Item(("bar",), p.BAR, p.BAR, slots=2))
    rds = [("k", kb, ks) for kb in range(4) for ks in range(4)] + [("v", db, t, u) for db in range(8) for t in range(2) for u in range(2)]
    for n, r in enumerate(rds):
        rel = p.BAR + 1 + (n * (NM - 4)) // 48
        if r[0] == "k":
            dl = NM + 16 * (r[1] - r[1] % p.KGRP) - p.RL
        else:
            rel = max(rel, pv_pos(p, r[1]) + 7)
            dl = NM + pv_pos(p, r[1] - r[1] % p.VGRP) - p.RL
        assert rel <= dl, (r, rel, dl)
        items.append(Item(r, rel, min(dl, rel + 4), after=[("bar",)]))
    g = p.BAR + p.DMA0
    items.append(Item(("m0k",), g - 1, g + 2, after=[("bar",)]))
    for i in range(4):
        items.append(Item(("dk", i), g, g + 4, after=[("m0k",)] + ([("dk", i - 1)] if i else []), lag=1, slots=p.DSLOT))
        g += p.DMAD
    items.append(Item(("m0v",), g - 2, g + 2, after=[("dk", 3)]))
    for i in range(4):
        items.append(Item(("dv", i), g, g + 4, after=[("m0v",)] + ([("dv", i - 1)] if i else []), lag=1, slots=p.DSLOT))
        g += p.DMAD
    items.append(Item(("adv",), g - p.DMAD + 1, g + 2, after=[("dv", 3)]))
    assert g - p.DMAD + 6 < p.BAR + NM
    res, used = modulo_schedule(items, NM)
    return NM, res, used


P2.DSLOT = 2


def attn_item(p, key, i):
    k = key[0]
    if k in ("exp", "cvt", "add"):
        if not 0 <= i + 1 < NT:
            return None
        n = key[1]
        s = V_S + n
        if k == "exp":
            return ["v_exp_f32 v%d, v%d" % (s, s)]
        kb, qb, r = n >> 4, (n >> 2) & 3, n & 3
        if k == "add":
            return ["v_add_f32 v%d, v%d, v%d" % (V_L + 4 * qb + (r & 1), V_L + 4 * qb + (r & 1), s)]
        return ["v_cvt_pk_bf16_f32 v%d, v%d, v%d" % (Preg((i + 1) & 1, qb, kb >> 1) + (kb & 1) * 2 + (r >> 1), s, s + 1)]
    if k == "bar":
        if i + 1 >= NT:
            return None
        return [WaitTag("K%d" % ((i + 2) % 4), "V%d" % ((i + 1) % 4)), "s_barrier"]
    if k == "k":
        return [rd_k(i + 2, key[1], key[2])] if i + 2 < NT else None
    if k == "v":
        return [rd_v(i + 1, *key[1:])] if 0 <= i + 1 < NT else None
    inloop = 0 <= i < 28
    if k == "m0k":
        return ["s_mov_b32 m0, s%d" % (S_MK + kslot(i + 5))] if i + 5 < NT or inloop else None
    if k == "dk":
        return [dma_k(i + 5, key[1], "s%d" % S_KV)] if i + 5 < NT or inloop else None
    if k == "m0v":
        return ["s_mov_b32 m0, s%d" % (S_MV + vslot(i + 3))] if i + 3 < NT else None
    if k == "dv":
        return [dma_v(i + 3, key[1], "s%d" % S_KV)] if i + 3 < NT else None
    if k == "adv":
        return ["s_add_u32 s%d, s%d, 16384" % (S_KV, S_KV)] if i + 3 < NT else None
    raise KeyError(key)


def attn_fillers(p, NM, res, i, only_own=False):
    f = {}
    for key, (pos, order) in sorted(res.items(), key=lambda kv: (kv[1][0] < NM, kv[1][1])):
        it = i - 1 if pos >= NM else i
        if only_own and pos >= NM:
            continue
        ins = attn_item(p, key, it)
        if ins:
            f.setdefault(pos % NM, []).extend(ins)
    return f


def attn_iter(p, NM, res, i):
    f = attn_fillers(p, NM, res, i)
    if i + 1 < NT:
        return interleave(qk_mfmas(p) + pv_mfmas(p, i & 1), f)
    out = []
    for g in range(64):
        out += f.get(g, [])
    return out + interleave(pv_mfmas(p, i & 1), {g - 64: v for g, v in f.items() if g >= 64})


def xmax4(v, t):
    return ["v_mov_b32 v%d, v%d" % (t, v), "v_permlane32_swap_b32 v%d, v%d" % (v, t), "v_max_f32 v%d, v%d, v%d" % (v, v, t),
            "v_mov_b32 v%d, v%d" % (t, v), "v_permlane16_swap_b32 v%d, v%d" % (v, t), "v_max_f32 v%d, v%d, v%d" % (v, v, t)]


def tile_max(dst):
    o = []
    for st in range(8):
        for qb in range(4):
            a = Sreg(st >> 1, qb) + (st & 1) * 2
            o.append("v_max3_f32 v%d, v%d, v%d, v%d" % (dst + qb, dst + qb, a, a + 1))
    return o


def gen_qproj(p):
    V_WRD, V_WDMA = V_NEGM, V_NEGM + 4
    o = []
    acc = lambda db, qb: V_S + (db * 4 + qb) * 4
    xreg = lambda j, s, qb: A_O + ((j % 4) * 8 + s * 4 + qb) * 4

    def wdma(j):
        return [["s_mov_b32 s%d, %d" % (S_T0, j * 64 * 8192), "s_mov_b32 m0, s%d" % (S_MV + j % 4)]] + \
            [T("buffer_load_dwordx4 v%d, s[%d:%d], s%d offen offset:%d lds" % (V_WDMA + i, S_WQ, S_WQ + 3, S_T0, 1024 * i), "W%d" % j)
             for i in range(4)]

    def xld(j):
        r = []
        for s in range(2):
            for qb in range(4):
                ins = "buffer_load_dwordx4 %s, v%d, s[%d:%d], s%d offen offset:%d" % (
                    ar(xreg(j, s, qb), 4), V_LANE16, S_XN, S_XN + 3, S_T1, 1024 * qb)
                r.append(["s_mov_b32 s%d, %d" % (S_T1, (2 * j + s) * 4096), ins] if qb == 0 else ins)
        return r

    def wrd(j):
        return ["ds_read_b64_tr_b16 %s, v%d offset:%d" % (ar(A_VS + db * 8 + s * 4 + u * 2, 2), V_WRD + (db >> 1),
                                                         (j % 4) * 16384 + (32 * s + 4 * u) * 256 + 8 * (db & 1))
                for db in range(8) for s in range(2) for u in range(2)]

    o += wdma(0) + xld(0) + wdma(1) + xld(1) + wdma(2) + xld(2) + xld(3)
    o += [WaitTag("W0"), "s_barrier"]
    BQ = 24
    first = wrd(0)
    o += first[:20]
    carry = first[20:]
    for j in range(10):
        ms = []
        for db in range(8):
            for qb in range(4):
                for s in range(2):
                    d = vr(acc(db, qb), 4)
                    m = mfma(d, ar(A_VS + db * 8 + s * 4, 4), ar(xreg(j, s, qb), 4), "0" if j == 0 and s == 0 else d)
                    if qb == 0 and s == 0:
                        m = [Need(ar(A_VS + db * 8, 8)), m]
                    ms.append(m)
        f = {}
        if carry:
            spread(f, carry, 0, BQ - 2)
        tags = ["W%d" % (j + 1)] if j < 9 else ["K0"]
        f.setdefault(BQ, []).extend([WaitTag(*tags), "s_barrier"])
        if j < 9:
            nxt = wrd(j + 1)
            spread(f, nxt[:20], BQ + 1, 63)
            carry = nxt[20:]
        else:
            spread(f, [rd_k(0, kb, ks) for kb in range(4) for ks in range(4)], BQ + 1, 56)
            cv = lambda db: ["v_cvt_pk_bf16_f32 v%d, v%d, v%d" % (Qreg(qb, db >> 1) + (db & 1) * 2 + hf, acc(db, qb) + 2 * hf, acc(db, qb) + 2 * hf + 1)
                             for qb in range(4) for hf in range(2)]
            for db in range(7):
                spread(f, cv(db), 8 * db + 12, min(8 * db + 19, 63))
            f.setdefault(64, []).extend(cv(7))
        ld = []
        if 1 <= j <= 6:
            spread(f, xld(j + 3), 1, 22)
        if j <= 6:
            ld += wdma(j + 3)
        if j == 6:
            ld += [dma_group_k(0)]
        if j == 7:
            ld += [dma_group_k(1), dma_group_v(0)]
        if j == 8:
            ld += [dma_group_k(2), dma_group_v(1)]
        if j == 9:
            ld += [dma_group_k(3)]
        spread(f, ld, BQ + 2, 60)
        o += interleave(ms, f)
    return o


def gen_mlp1():
    V_RD, V_DMA, V_L2 = 2, 6, 10
    V_B = 12
    HREG = lambda n, s, db: 64 + (n % 3) * 40 + (s * 5 + db) * 4
    AREG = lambda n, fb, s: 128 + (n % 2) * 32 + (fb * 2 + s) * 4
    ACC = lambda fb, db: (fb * 5 + db) * 4
    o = []
    o += ["v_and_b32 v60, 63, v0", "v_lshrrev_b32 v61, 4, v60", "v_and_b32 v62, 15, v60",
          "v_lshrrev_b32 v63, 2, v62", "v_lshl_add_u32 v63, v61, 3, v63", "v_lshlrev_b32 v63, 7, v63",
          "v_and_b32 v20, 3, v60", "v_lshl_add_u32 v63, v20, 3, v63",
          "s_lshl_b32 s%d, s%d, 15" % (S_T0, S_W), "v_add_u32 v63, s%d, v63" % S_T0,
          "v_lshrrev_b32 v20, 3, v62", "v_and_b32 v21, 1, v61", "v_lshl_or_b32 v20, v21, 1, v20"]
    for fb in range(4):
        o += ["v_xor_b32 v21, %d, v20" % fb, "v_lshl_add_u32 v%d, v21, 5, v63" % (V_RD + fb)]
    o += ["v_lshrrev_b32 v20, 3, v60", "v_mul_u32_u24 v21, 3456, v20", "v_and_b32 v22, 7, v60", "v_and_b32 v23, 1, v61"]
    for pp in range(4):
        o += ["v_or_b32 v24, %d, v23" % ((pp & 1) << 1), "v_lshlrev_b32 v24, 1, v24", "v_xor_b32 v24, v24, v22",
              "v_lshl_add_u32 v24, v24, 4, v21", "v_add_u32 v%d, %d, v24" % (V_DMA + pp, pp * (8 * 3456 - 1024))]
    o += ["v_add_u32 v%d, 4096, v%d" % (V_L2, V_LANE16), "v_lshlrev_b32 v25, 3, v61"]
    for fb in range(4):
        o.append("buffer_load_dwordx2 v[%d:%d], v25, s[%d:%d], 0 offen offset:%d" % (V_B + 2 * fb, V_B + 2 * fb + 1, S_B1, S_B1 + 3, 32 * fb))
    S_A, S_Bo, S_M = 45, 46, 47
    o += ["s_mul_i32 s%d, s%d, %d" % (S_A, S_W, 512 * 3456), "s_mul_i32 s%d, s%d, %d" % (S_Bo, S_W, 16 * 5120),
          "s_lshl_b32 s%d, s%d, 15" % (S_M, S_W)]

    def loads(n):
        r = []
        for pp in range(8):
            ins = T("buffer_load_dwordx4 v%d, s[%d:%d], s%d offen offset:%d lds" % (V_DMA + (pp & 3), S_W1, S_W1 + 3, S_T0, 1024 * (pp & 3)), "A%d" % n)
            if pp & 3 == 0:
                ins = ["s_add_u32 s%d, s%d, %d" % (S_T0, S_A, (64 * n + 8 * pp) * 3456),
                       "s_add_u32 m0, s%d, %d" % (S_M, (n % 3) * 8192 + 1024 * pp), ins]
            r.append(ins)
        for s in range(2):
            for db in range(5):
                ins = "buffer_load_dwordx4 %s, v%d, s[%d:%d], s%d offen offset:%d" % (
                    vr(HREG(n, s, db), 4), V_L2 if db == 4 else V_LANE16, S_H, S_H + 3, S_T1, 1024 * (db & 3))
                if db == 0:
                    ins = ["s_add_u32 s%d, s%d, %d" % (S_T1, S_Bo, (2 * n + s) * 5120), ins]
                r.append(ins)
        return r

    def reads(n):
        return ["ds_read_b64_tr_b16 %s, v%d offset:%d" % (ar(AREG(n, fb, s) + 2 * u, 2), V_RD + fb, (n % 3) * 8192 + (32 * s + 4 * u) * 128)
                for fb in range(4) for s in range(2) for u in range(2)]

    NS = 8
    o += loads(0) + loads(1) + [WaitTag("A0")] + reads(0)
    for n in range(NS):
        ms = []
        for fb in range(4):
            for db in range(5):
                for s in range(2):
                    d = ar(ACC(fb, db), 4)
                    ms.append(mfma(d, ar(AREG(n, fb, s), 4), vr(HREG(n, s, db), 4), "0" if n == 0 and s == 0 else d))
        f = {}
        if n + 2 < NS:
            spread(f, loads(n + 2), 0, 19)
        if n + 1 < NS:
            f.setdefault(20, []).append(WaitTag("A%d" % (n + 1)))
            spread(f, reads(n + 1), 20, 35)
        o += interleave(ms, f)
    o += [WaitLds(), "s_barrier", "s_mul_i32 s%d, s%d, 20480" % (S_T0, S_W), "v_add_u32 v20, s%d, v%d" % (S_T0, V_LANE16)]
    for b in range(20):
        o.append("ds_write_b128 v20, %s offset:%d" % (ar(4 * b, 4), 1024 * b))
    o += [WaitLds(), "s_barrier"]
    K0, K1 = -2.0 * LOG2E * math.sqrt(2.0 / math.pi), 0.044715
    o += ["s_mov_b32 s45, %s" % fbits(K0), "s_mov_b32 s46, %s" % fbits(K0 * K1), "v_add_u32 v11, 61440, v%d" % V_LANE16]
    for w in range(4):
        o += ["s_cmp_lg_u32 s%d, %d" % (S_W, w), "s_cbranch_scc1 L_m1_w%d" % w]
        frs = [n for n in range(10) if n % 4 == w]
        for k, n in enumerate(frs):
            t, db = n // 5, n % 5
            for hf in range(2):
                for src in range(4):
                    o.append("ds_read_b128 %s, v%d offset:%d" % (vr(64 + k * 32 + hf * 16 + src * 4, 4), V_LANE16 if src < 3 else 11,
                                                                 (src % 3) * 20480 + ((2 * t + hf) * 5 + db) * 1024))
        for k, n in enumerate(frs):
            t, db = n // 5, n % 5
            for hf in range(2):
                b = 64 + k * 32 + hf * 16
                fb = 2 * t + hf
                o += ["v_lshlrev_b32 v20, 16, v%d" % (V_B + 2 * fb), "v_and_b32 v21, 0xffff0000, v%d" % (V_B + 2 * fb),
                      "v_lshlrev_b32 v22, 16, v%d" % (V_B + 2 * fb + 1), "v_and_b32 v23, 0xffff0000, v%d" % (V_B + 2 * fb + 1)]
                for r in range(4):
                    o += ["v_add_f32 v%d, v%d, v%d" % (b + r, b + r, b + 4 + r), "v_add_f32 v%d, v%d, v%d" % (b + 8 + r, b + 8 + r, b + 12 + r),
                          "v_add_f32 v%d, v%d, v%d" % (b + r, b + r, 20 + r)]
                for r in range(4):
                    o += ["v_add_f32 v%d, v%d, v%d" % (b + r, b + r, b + 8 + r)]
                for r in range(4):
                    o += ["v_mul_f32 v%d, v%d, v%d" % (b + 4 + r, b + r, b + r)]
                for r in range(4):
                    o += ["v_mul_f32 v%d, s46, v%d" % (b + 4 + r, b + 4 + r)]
                for r in range(4):
                    o += ["v_add_f32 v%d, s45, v%d" % (b + 4 + r, b + 4 + r)]
                for r in range(4):
                    o += ["v_mul_f32 v%d, v%d, v%d" % (b + 4 + r, b + 4 + r, b + r)]
                for r in range(4):
                    o += ["v_exp_f32 v%d, v%d" % (b + 4 + r, b + 4 + r)]
                for r in range(4):
                    o += ["v_add_f32 v%d, 1.0, v%d" % (b + 4 + r, b + 4 + r)]
                for r in range(4):
                    o += ["v_rcp_f32 v%d, v%d" % (b + 4 + r, b + 4 + r)]
                for r in range(4):
                    o += ["v_mul_f32 v%d, v%d, v%d" % (b + r, b + r, b + 4 + r)]
                for h2 in range(2):
                    o += ["v_cvt_pk_bf16_f32 v%d, v%d, v%d" % (28 + 4 * k + 2 * hf + h2, b + 2 * h2, b + 2 * h2 + 1)]
            o += ["s_mov_b32 s%d, %d" % (S_T0, t * 5120 + db * 1024),
                  "buffer_store_dwordx4 %s, v%d, s[%d:%d], s%d offen" % (vr(28 + 4 * k, 4), V_LANE16, S_U, S_U + 3, S_T0)]
        o += ["s_endpgm", "L_m1_w%d:" % w]
    return o


def gen_attn(p):
    NM, res, used = attn_schedule(p)
    o = ["s_cmp_ge_u32 s2, 256", "s_cbranch_scc1 L_at_done"]
    o += ["s_load_dwordx4 s[60:63], s[0:1], %d" % A_K, "s_load_dwordx2 s[64:65], s[0:1], %d" % A_WQ,
          "s_load_dwordx4 s[68:71], s[0:1], %d" % A_W1, "s_load_dwordx2 s[66:67], s[0:1], %d" % A_WS]
    o += ["v_lshrrev_b32 v60, 6, v0", "v_and_b32 v61, 63, v0", "v_readfirstlane_b32 s%d, v60" % S_W,
          "v_lshlrev_b32 v%d, 4, v61" % V_LANE16,
          "s_and_b32 s72, s2, 7", "s_lshr_b32 s73, s2, 3",
          "s_lshl_b32 s74, s72, 2", "s_lshr_b32 s75, s2, 6", "s_add_u32 s74, s74, s75",
          "s_and_b32 s75, s73, 7",
          "s_lshl_b32 s76, s75, 2", "s_add_u32 s76, s76, s%d" % S_W]
    o += ["s_mul_i32 s77, s76, 81920"] + srd(S_XN, 66, "s77", 81920)
    o += ["s_lshl_b32 s77, s74, 8"] + srd(S_WQ, 64, "s77", 640 * 8192 - 31 * 256)
    V_WRD, V_WDMA = V_NEGM, V_NEGM + 4
    o += ["v_lshrrev_b32 v62, 4, v61", "v_and_b32 v63, 15, v61", "s_lshl_b32 s78, s%d, 4" % S_W,
          "v_add_u32 v60, s78, v62"]
    o += ["v_lshlrev_b32 v20, 2, v62", "v_xor_b32 v20, v20, v63", "v_lshlrev_b32 v20, 4, v20", "v_lshl_add_u32 v20, v60, 13, v20"]
    for i in range(4):
        o.append("v_add_u32 v%d, %d, v20" % (V_WDMA + i, i * (4 * 8192 - 1024)))
    for s in range(4):
        o += ["s_lshl_b32 s77, s%d, 12" % S_W, "s_add_u32 s%d, s77, %d" % (S_MK + s, LDS_K + s * 16384),
              "s_add_u32 s%d, s77, %d" % (S_MV + s, LDS_V + s * 16384)]
    pre = o
    o = []
    o += ["v_lshrrev_b32 v20, 2, v63", "v_lshl_add_u32 v21, v62, 3, v20", "v_lshlrev_b32 v21, 8, v21",
          "v_and_b32 v22, 3, v63", "v_lshl_add_u32 v21, v22, 4, v21", "v_add_u32 v21, %d, v21" % LDS_V]
    for ks in range(4):
        o += ["v_xor_b32 v23, %d, v20" % ks, "v_lshl_add_u32 v%d, v23, 6, v21" % (V_WRD + ks)]
    o += ["v_xor_b32 v23, v62, v63", "v_lshlrev_b32 v21, 8, v63"]
    for ks in range(4):
        o += ["v_xor_b32 v32, %d, v23" % (4 * ks), "v_lshl_add_u32 v%d, v32, 4, v21" % (V_KRD + ks)]
    o += ["v_lshl_add_u32 v23, v62, 2, v20", "v_lshlrev_b32 v21, 8, v23", "v_lshl_add_u32 v21, v22, 3, v21",
          "v_add_u32 v21, %d, v21" % LDS_V, "v_and_b32 v23, 7, v23"]
    for db in range(8):
        o += ["v_xor_b32 v32, %d, v23" % db, "v_lshl_add_u32 v%d, v32, 5, v21" % (V_VRD + db)]
    o += ["v_lshlrev_b32 v21, 8, v60"]
    for i in range(4):
        o += ["v_add_u32 v32, %d, v62" % (4 * i), "v_xor_b32 v32, v32, v63", "v_lshl_add_u32 v%d, v32, 4, v21" % (V_KDMA + i)]
    for i in range(2):
        o += ["v_add_u32 v32, %d, v62" % (4 * i), "v_lshlrev_b32 v32, 1, v32", "v_xor_b32 v32, v32, v63",
              "v_lshl_add_u32 v%d, v32, 4, v21" % (V_VDMA + i)]
    o += ["s_lshl_b32 s77, s74, 19"] + srd(S_K, 60, "s77", 524288)
    o += ["s_add_u32 s78, s62, s77", "s_addc_u32 s79, s63, 0", "s_sub_u32 s%d, s78, 32768" % S_V, "s_subb_u32 s%d, s79, 0" % (S_V + 1),
          "s_mov_b32 s%d, %d" % (S_V + 2, 524288 + 32768), "s_mov_b32 s%d, 0x20000" % (S_V + 3)]
    o += ["s_lshl_b32 s77, s76, 19", "s_lshl_b32 s78, s74, 14", "s_add_u32 s77, s77, s78", "s_add_u32 s77, s77, %d" % OF_OFF] + \
        srd(S_O, 66, "s77", 16384)
    o += ["s_mul_i32 s80, s72, 27", "s_add_u32 s80, s80, s73", "s_lshr_b32 s81, s80, 3", "s_and_b32 s80, s80, 7",
          "s_min_u32 s81, s81, 26"]
    o += ["s_lshl_b32 s77, s81, 7"] + srd(S_W1, 68, "s77", 2048 * 3456 - 26 * 128)
    o += srd(S_B1, 70, "s77", 128)
    o += ["s_mul_i32 s77, s80, %d" % (64 * 5120), "s_add_u32 s77, s77, %d" % HF_OFF] + srd(S_H, 66, "s77", 64 * 5120)
    o += ["s_mul_i32 s77, s80, %d" % (54 * 5120), "s_mul_i32 s78, s81, 10240", "s_add_u32 s77, s77, s78",
          "s_add_u32 s77, s77, %d" % UF_OFF] + srd(S_U, 66, "s77", 10240)
    o += ["s_mov_b32 s%d, 0" % S_RETRY]
    o += ["v_and_b32 v32, 3, v61", "v_mov_b32 v33, 0x3f803f80", "v_cmp_eq_u32 vcc, 0, v32", "v_cndmask_b32 v%d, 0, v33, vcc" % V_ONE]
    o += ["v_mov_b32 v%d, v%d" % (V_ONE + k, V_ONE) for k in range(1, 4)]
    o += ["v_mov_b32 v%d, 0xff800000" % (V_FLOOR + k) for k in range(4)]
    setup = o
    q = gen_qproj(p)
    cut = next(k for k, x in enumerate(q) if isinstance(x, WaitTag))
    o = pre + q[:cut] + setup + q[cut:]
    o += ["L_at_start:"]
    f = {}
    spread(f, ["v_accvgpr_write_b32 a%d, 0" % k for k in range(128)], 0, 63)
    o += interleave(qk_mfmas(p, True), f)
    o += ["v_mov_b32 v%d, 0" % (V_L + k) for k in range(16)]
    o += ["s_mov_b32 s%d, %d" % (S_KV, 4 * 16384)]
    o += ["v_mov_b32 v%d, v%d" % (V_T + k, V_FLOOR + k) for k in range(4)]
    o += tile_max(V_T)
    for qb in range(4):
        o += xmax4(V_T + qb, V_NEGM + 4 * qb)
    for qb in range(4):
        o += ["v_sub_f32 v%d, 0, v%d" % (V_NEGM + 4 * qb + r, V_T + qb) for r in range(4)]
    for kb in range(4):
        for qb in range(4):
            o += ["v_sub_f32 v%d, v%d, v%d" % (Sreg(kb, qb) + r, Sreg(kb, qb) + r, V_T + qb) for r in range(4)]
    f = attn_fillers(p, NM, res, -1, only_own=True)
    first = [k for k in sorted(f) if k >= p.BAR] + [k for k in sorted(f) if k < p.BAR]
    mem, alu = [], []
    for g in sorted(f):
        for x in as_items(f[g]):
            (alu if x.kind in ("valu", "trans") else mem).append(x)
    o += mem + alu
    body = []
    for i in range(4):
        body += attn_iter(p, NM, res, i)
    o.append(Loop("L_at_loop", body, ["s_cmp_lt_u32 s%d, %d" % (S_KV, (32 if res[("adv",)][0] >= NM else 33) * 16384), "s_cbranch_scc1 L_at_loop"]))
    for i in range(28, 32):
        o += attn_iter(p, NM, res, i)
    if not p.ONES:
        for qb in range(4):
            l = V_L + 4 * qb
            o += ["v_add_f32 v%d, v%d, v%d" % (l, l, l + 1),
                  "v_mov_b32 v%d, v%d" % (l + 1, l), "v_permlane32_swap_b32 v%d, v%d" % (l, l + 1), "v_add_f32 v%d, v%d, v%d" % (l, l, l + 1),
                  "v_mov_b32 v%d, v%d" % (l + 1, l), "v_permlane16_swap_b32 v%d, v%d" % (l, l + 1), "v_add_f32 v%d, v%d, v%d" % (l, l, l + 1)]
    o += ["v_mov_b32 v%d, %s" % (V_T, fbits(2.0 ** 20)), "s_mov_b64 s[82:83], 0"]
    for qb in range(4):
        o += ["v_cmp_nle_f32 vcc, v%d, v%d" % (V_L + 4 * qb, V_T), "s_or_b64 s[82:83], s[82:83], vcc"]
    o += ["s_or_b32 s82, s82, s83", "v_mov_b32 v%d, s82" % (V_T + 1), "s_lshl_b32 s77, s%d, 2" % S_W, "s_add_u32 s77, s77, %d" % LDS_FLAG,
          "v_mov_b32 v%d, s77" % (V_T + 2), "ds_write_b32 v%d, v%d" % (V_T + 2, V_T + 1), WaitLds(), "s_barrier",
          "v_mov_b32 v%d, %d" % (V_T + 2, LDS_FLAG), "ds_read_b128 v[%d:%d], v%d" % (V_NEGM, V_NEGM + 3, V_T + 2)]
    for qb in range(4):
        o.append("v_rcp_f32 v%d, v%d" % (V_L + 4 * qb, V_L + 4 * qb))
    for s in range(4):
        o.append("s_mov_b32 s%d, %d" % (S_T0, s * 4096))
        for qb in range(4):
            b = V_S + ((s * 4 + qb) % 4) * 8
            pk = V_P + (s * 4 + qb) * 4
            for hf in range(2):
                o += ["v_accvgpr_read_b32 v%d, a%d" % (b + 4 * hf + r, Oreg(2 * s + hf, qb) + r) for r in range(4)]
            o += ["v_mul_f32 v%d, v%d, v%d" % (b + r, b + r, V_L + 4 * qb) for r in range(8)]
            o += ["v_cvt_pk_bf16_f32 v%d, v%d, v%d" % (pk + r, b + 2 * r, b + 2 * r + 1) for r in range(4)]
            o.append("buffer_store_dwordx4 %s, v%d, s[%d:%d], s%d offen offset:%d" % (vr(pk, 4), V_LANE16, S_O, S_O + 3, S_T0, 1024 * qb))
    o += ["v_or_b32 v%d, v%d, v%d" % (V_NEGM, V_NEGM, V_NEGM + 1), "v_or_b32 v%d, v%d, v%d" % (V_NEGM + 2, V_NEGM + 2, V_NEGM + 3),
          "v_or_b32 v%d, v%d, v%d" % (V_NEGM, V_NEGM, V_NEGM + 2), "v_readfirstlane_b32 s82, v%d" % V_NEGM,
          "s_cmp_eq_u32 s82, 0", "s_cbranch_scc1 L_at_ok", "s_cmp_eq_u32 s%d, 0" % S_RETRY, "s_cbranch_scc1 L_at_retry", "L_at_ok:"]
    o += ["s_cmp_ge_u32 s73, 27", "s_cbranch_scc1 L_at_done"]
    o += gen_mlp1()
    o += ["L_at_done:", "s_endpgm"]
    o += ["L_at_retry:", "s_waitcnt vmcnt(0) lgkmcnt(0)", "s_mov_b32 s%d, 1" % S_RETRY, "s_mov_b32 s%d, 0" % S_KV,
          "s_mov_b32 m0, s%d" % S_MK]
    body = ["s_barrier"] + [dma_k(0, i, "s%d" % S_KV) for i in range(4)] + ["s_waitcnt vmcnt(0)", "s_barrier"]
    body += [rd_k(0, kb, ks) for kb in range(4) for ks in range(4)] + qk_mfmas(p, True) + tile_max(V_FLOOR)
    o.append(Loop("L_at_maxpass", body, ["s_add_u32 s%d, s%d, 16384" % (S_KV, S_KV), "s_cmp_lt_u32 s%d, %d" % (S_KV, NT * 16384),
                                          "s_cbranch_scc1 L_at_maxpass"]))
    o += ["s_barrier"] + dma_group_k(0) + dma_group_k(1) + dma_group_v(0) + dma_group_k(2) + dma_group_v(1) + dma_group_k(3)
    o += ["s_waitcnt vmcnt(0)", "s_barrier"] + [rd_k(0, kb, ks) for kb in range(4) for ks in range(4)]
    o += ["s_waitcnt lgkmcnt(0)", "s_nop 7", "s_branch L_at_start"]
    rep = []
    lines = finalize(o, rep)
    sys.stderr.write("attn: nops in loops %s, max gap use %d, total slots %d / %d\n" % (rep, max(used), sum(used), 2 * NM))
    return kernel_text("attn_kernel", lines, 512, 256), LDS_FLAG + 64


def gen_out():
    S_OF, S_WO, S_UF, S_W2, S_X, S_B2, S_OUT = 4, 8, 12, 16, 20, 24, 28
    S_Wv, S_T0, S_T1, S_M, S_A, S_Bo = 40, 41, 42, 43, 44, 45
    V_L16, V_L2, V_WOD, V_WOR, V_W2D, V_W2R, V_XO, V_X, V_B2 = 1, 2, 4, 14, 16, 20, 24, 26, 36
    DREG = lambda n: 64 + (n % 3) * 40
    TREG = lambda n: 160 + (n % 2) * 40
    SACC = lambda nb, qb: (nb * 4 + qb) * 4
    YACC = lambda nb, qb: 80 + (nb * 4 + qb) * 4
    SLOT = 10240
    o = ["s_cmp_ge_u32 s2, 256", "s_cbranch_scc1 L_o_done"]
    o += ["s_load_dwordx2 s[60:61], s[0:1], %d" % A_WO, "s_load_dwordx2 s[62:63], s[0:1], %d" % A_WS,
          "s_load_dwordx4 s[64:67], s[0:1], %d" % A_W2, "s_load_dwordx2 s[68:69], s[0:1], %d" % A_X,
          "s_load_dwordx2 s[70:71], s[0:1], %d" % A_OUT]
    o += ["v_lshrrev_b32 v60, 6, v0", "v_and_b32 v61, 63, v0", "v_readfirstlane_b32 s%d, v60" % S_Wv,
          "v_lshlrev_b32 v%d, 4, v61" % V_L16, "v_add_u32 v%d, 4096, v%d" % (V_L2, V_L16),
          "s_and_b32 s72, s2, 7", "s_lshr_b32 s73, s2, 3",
          "s_lshr_b32 s74, s72, 1", "s_lshl_b32 s74, s74, 3", "s_lshr_b32 s75, s73, 2", "s_add_u32 s74, s74, s75",
          "s_and_b32 s75, s72, 1", "s_lshl_b32 s75, s75, 2", "s_and_b32 s76, s73, 3", "s_add_u32 s75, s75, s76"]
    for pp in range(10):
        o += ["v_add_u32 v40, %d, v61" % (64 * pp), "v_mul_u32_u24 v41, 6554, v40", "v_lshrrev_b32 v41, 16, v41",
              "v_mul_u32_u24 v42, 10, v41", "v_sub_u32 v42, v40, v42", "v_mul_u32_u24 v41, 1280, v41",
              "v_lshl_add_u32 v41, v42, 4, v41", "v_subrev_u32 v%d, %d, v41" % (V_WOD + pp, 1024 * (pp & 3))]
    o += ["s_lshl_b32 s77, s74, 19", "s_add_u32 s77, s77, %d" % OF_OFF] + srd(S_OF, 62, "s77", 128 * 4096)
    o += ["s_mul_i32 s77, s75, 160"] + srd(S_WO, 60, "s77", 4096 * 1280 - 7 * 160)
    o += ["s_mul_i32 s%d, s%d, %d" % (S_M, S_Wv, 3 * SLOT), "s_mul_i32 s%d, s%d, %d" % (S_A, S_Wv, 1024 * 1280),
          "s_lshl_b32 s%d, s%d, 17" % (S_Bo, S_Wv)]

    def loads_o(n):
        r = []
        for pp in range(10):
            ins = T("buffer_load_dwordx4 v%d, s[%d:%d], s%d offen offset:%d lds" % (V_WOD + pp, S_WO, S_WO + 3, S_T0, 1024 * (pp & 3)), "A%d" % n)
            if pp & 3 == 0:
                ins = ["s_add_u32 m0, s%d, %d" % (S_M, (n % 3) * SLOT + 1024 * pp), ins]
            if pp == 0:
                ins = ["s_add_u32 s%d, s%d, %d" % (S_T0, S_A, 64 * n * 1280)] + ins
            r.append(ins)
        for s in range(2):
            for qb in range(4):
                ins = "buffer_load_dwordx4 %s, v%d, s[%d:%d], s%d offen offset:%d" % (
                    vr(DREG(n) + (s * 4 + qb) * 4, 4), V_L16, S_OF, S_OF + 3, S_T1, 1024 * qb)
                if qb == 0:
                    ins = ["s_add_u32 s%d, s%d, %d" % (S_T1, S_Bo, (2 * n + s) * 4096), ins]
                r.append(ins)
        return r

    def reads_o(n):
        return ["ds_read_b64_tr_b16 %s, v%d offset:%d" % (ar(TREG(n) + (nb * 2 + s) * 4 + 2 * u, 2), V_WOR,
                                                         (n % 3) * SLOT + (32 * s + 16 * u) * 160 + nb * 32)
                for nb in range(5) for s in range(2) for u in range(2)]

    def mf_o(n):
        return [mfma(ar(SACC(nb, qb), 4), ar(TREG(n) + (nb * 2 + s) * 4, 4), vr(DREG(n) + (s * 4 + qb) * 4, 4),
                     "0" if n == 0 and s == 0 else ar(SACC(nb, qb), 4))
                for nb in range(5) for qb in range(4) for s in range(2)]

    NO, NY = 16, 7
    S_A2, S_B2o = 46, 47

    def loads_y(n):
        k = n - NO
        r = []
        for pp in range(8):
            ins = T("buffer_load_dwordx4 v%d, s[%d:%d], s%d offen offset:%d lds" % (V_W2D + (pp & 3), S_W2, S_W2 + 3, S_T0, 1024 * (pp & 3)), "A%d" % n)
            if pp & 3 == 0:
                ins = ["s_add_u32 s%d, s%d, %d" % (S_T0, S_A2, (64 * k + 8 * pp) * 4096),
                       "s_add_u32 m0, s%d, %d" % (S_M, (n % 3) * SLOT + 1024 * pp), ins]
            r.append(ins)
        for s in range(2):
            for nb in range(5):
                ins = "buffer_load_dwordx4 %s, v%d, s[%d:%d], s%d offen offset:%d" % (
                    vr(DREG(n) + (s * 5 + nb) * 4, 4), V_L2 if nb == 4 else V_L16, S_UF, S_UF + 3, S_T1, 1024 * (nb & 3))
                if nb == 0:
                    ins = ["s_add_u32 s%d, s%d, %d" % (S_T1, S_B2o, (2 * k + s) * 5120), ins]
                r.append(ins)
        return r

    def reads_y(n):
        return ["ds_read_b64_tr_b16 %s, v%d offset:%d" % (ar(TREG(n) + (qb * 2 + s) * 4 + 2 * u, 2), V_W2R + qb,
                                                         (n % 3) * SLOT + (32 * s + 16 * u) * 128)
                for qb in range(4) for s in range(2) for u in range(2)]

    def mf_y(n):
        return [mfma(ar(YACC(nb, qb), 4), vr(DREG(n) + (s * 5 + nb) * 4, 4), ar(TREG(n) + (qb * 2 + s) * 4, 4),
                     "0" if n == NO and s == 0 else ar(YACC(nb, qb), 4))
                for qb in range(4) for nb in range(5) for s in range(2)]

    loads = lambda n: loads_o(n) if n < NO else loads_y(n)
    reads = lambda n: reads_o(n) if n < NO else reads_y(n)
    mf = lambda n: mf_o(n) if n < NO else mf_y(n)
    o += loads(0) + loads(1)
    o += ["v_lshrrev_b32 v62, 4, v61", "v_and_b32 v63, 15, v61", "v_lshrrev_b32 v40, 2, v63", "v_lshl_add_u32 v40, v62, 2, v40",
          "v_and_b32 v41, 3, v61", "v_mul_u32_u24 v42, 160, v40", "v_lshl_add_u32 v42, v41, 3, v42",
          "v_add_u32 v%d, s%d, v42" % (V_WOR, S_M),
          "v_lshlrev_b32 v42, 7, v40", "v_lshl_add_u32 v42, v41, 3, v42", "v_add_u32 v42, s%d, v42" % S_M,
          "v_lshrrev_b32 v40, 1, v40", "v_and_b32 v40, 3, v40"]
    for qb in range(4):
        o += ["v_xor_b32 v43, %d, v40" % qb, "v_lshl_add_u32 v%d, v43, 5, v42" % (V_W2R + qb)]
    o += ["v_lshrrev_b32 v40, 3, v61", "v_and_b32 v41, 6, v40", "v_and_b32 v42, 7, v61", "v_xor_b32 v41, v41, v42",
          "v_lshlrev_b32 v40, 12, v40", "v_lshl_add_u32 v40, v41, 4, v40"]
    for pp in range(4):
        o.append("v_add_u32 v%d, %d, v40" % (V_W2D + pp, pp * (32768 - 1024)))
    o += ["s_mul_i32 s77, s75, %d" % (54 * 5120), "s_add_u32 s77, s77, %d" % UF_OFF] + srd(S_UF, 62, "s77", 54 * 5120)
    o += ["s_lshl_b32 s77, s74, 7"] + srd(S_W2, 64, "s77", 1728 * 4096 - 31 * 128)
    o += ["s_mul_i32 s%d, s%d, %d" % (S_A2, S_Wv, 448 * 4096), "s_mul_i32 s%d, s%d, %d" % (S_B2o, S_Wv, 14 * 5120)]
    o += ["s_lshl_b32 s77, s74, 2", "s_add_u32 s77, s77, s%d" % S_Wv, "s_lshl_b32 s78, s77, 5"] + srd(S_B2, 66, "s78", 32)
    o += ["s_mul_i32 s77, s77, %d" % (16 * 1280), "s_mul_i32 s78, s75, 160", "s_add_u32 s77, s77, s78"]
    o += srd(S_X, 68, "s77", 15 * 1280 + 160) + srd(S_OUT, 70, "s77", 15 * 1280 + 160)
    o += ["v_mul_u32_u24 v%d, 1280, v63" % V_XO, "v_lshl_add_u32 v%d, v62, 3, v%d" % (V_XO, V_XO), "v_lshlrev_b32 v40, 1, v63"]
    o += [WaitTag("A0")] + reads(0)
    for n in range(NO + NY):
        f = {}
        if n + 2 < NO + NY:
            spread(f, loads(n + 2), 0, 19)
        if n == NO + NY - 2:
            spread(f, ["buffer_load_dwordx2 v[%d:%d], v%d, s[%d:%d], 0 offen offset:%d" % (V_X + 2 * nb, V_X + 2 * nb + 1, V_XO, S_X, S_X + 3, 32 * nb)
                       for nb in range(5)] + ["buffer_load_ushort v%d, v40, s[%d:%d], 0 offen" % (V_B2, S_B2, S_B2 + 3)], 0, 10)
        if n + 1 < NO + NY:
            f.setdefault(18, []).append(WaitTag("A%d" % (n + 1)))
            spread(f, reads(n + 1), 18, 37)
        o += interleave(mf(n), f)
    o += [WaitLds(), "s_barrier", "s_nop 7"]
    for w in range(4):
        o += ["s_cmp_lg_u32 s%d, %d" % (S_Wv, w), "s_cbranch_scc1 L_o_w%d" % w]
        for own in range(4):
            if own == w:
                continue
            base = (own * 3 + ((w - own - 1) & 3)) * 10240
            o.append("v_add_u32 v41, %d, v%d" % (base, V_L16))
            for nb in range(5):
                o += ["ds_write_b128 v41, %s offset:%d" % (ar(SACC(nb, own), 4), 1024 * nb),
                      "ds_write_b128 v41, %s offset:%d" % (ar(YACC(nb, own), 4), 5120 + 1024 * nb)]
        for nb in range(5):
            o += ["v_accvgpr_read_b32 v%d, a%d" % (64 + 4 * nb + r, SACC(nb, w) + r) for r in range(4)]
            o += ["v_accvgpr_read_b32 v%d, a%d" % (84 + 4 * nb + r, YACC(nb, w) + r) for r in range(4)]
        o += [WaitLds(), "s_branch L_o_red", "L_o_w%d:" % w]
    o += ["L_o_red:", "s_barrier", "s_mul_i32 s77, s%d, 30720" % S_Wv, "v_add_u32 v41, s77, v%d" % V_L16]
    for src in range(3):
        for b in range(10):
            o.append("ds_read_b128 %s, v41 offset:%d" % (vr(104 + src * 40 + 4 * b, 4), src * 10240 + 1024 * b))
    o += ["v_lshlrev_b32 v%d, 16, v%d" % (V_B2, V_B2), "s_mov_b32 s77, %s" % fbits(-LOG2E)]
    for src in range(3):
        o += ["v_add_f32 v%d, v%d, v%d" % (64 + k, 64 + k, 104 + src * 40 + k) for k in range(40)]
    o += ["v_add_f32 v%d, v%d, v%d" % (84 + k, 84 + k, V_B2) for k in range(20)]
    o += ["v_mul_f32 v%d, s77, v%d" % (104 + k, 84 + k) for k in range(20)]
    o += ["v_exp_f32 v%d, v%d" % (104 + k, 104 + k) for k in range(20)]
    o += ["v_add_f32 v%d, 1.0, v%d" % (104 + k, 104 + k) for k in range(20)]
    o += ["v_rcp_f32 v%d, v%d" % (104 + k, 104 + k) for k in range(20)]
    o += ["v_mul_f32 v%d, v%d, v%d" % (84 + k, 84 + k, 104 + k) for k in range(20)]
    o += unpack(104, V_X, 10)
    o += ["v_fmac_f32 v%d, v%d, v%d" % (104 + k, 64 + k, 84 + k) for k in range(20)]
    o += ["v_cvt_pk_bf16_f32 v%d, v%d, v%d" % (64 + k, 104 + 2 * k, 105 + 2 * k) for k in range(10)]
    for nb in range(5):
        o.append("buffer_store_dwordx2 v[%d:%d], v%d, s[%d:%d], 0 offen offset:%d" % (64 + 2 * nb, 65 + 2 * nb, V_XO, S_OUT, S_OUT + 3, 32 * nb))
    o += ["L_o_done:", "s_endpgm"]
    return kernel_text("out_kernel", finalize(o), 512, 256), 4 * 3 * SLOT


HEADER = """; Generated by my own script (dev/gen.py).  Three launches:
"""


def build(p=P2):
    k1, l1 = gen_ln()
    k2, l2 = gen_attn(p)
    k3, l3 = gen_out()
    hdr = HEADER + "; @launch kernel=ln_kernel grid=(256,1,1) block=(256,1,1) lds=%d\n" % l1
    hdr += "; @launch kernel=attn_kernel grid=(256,1,1) block=(256,1,1) lds=%d\n" % l2
    hdr += "; @launch kernel=out_kernel grid=(256,1,1) block=(256,1,1) lds=%d\n" % l3
    return hdr + '.amdgcn_target "amdgcn-amd-amdhsa--gfx950"\n' + k1 + k2 + k3


if __name__ == "__main__":
    out = sys.argv[1] if len(sys.argv) > 1 else "recurrent_scan__gqa_block_cached__mixer_token_mlp__prompt.s"
    for a in sys.argv[2:]:
        k, v = a.split("=")
        setattr(P2, k, int(v))
    open(out, "w").write(build())
```
